```python
import torch

def _softmax(x, axis=-1):
    return torch.softmax(x, dim=axis)
def _gelu(x):
    return torch.nn.functional.gelu(x, approximate="tanh")
def _silu(x):
    return torch.nn.functional.silu(x)
def _sigmoid(x):
    return torch.sigmoid(x)
def _layernorm(x, axis=-1, eps=1e-5):
    m = x.mean(dim=axis, keepdim=True)
    v = x.var(dim=axis, keepdim=True, unbiased=False)
    return (x - m) / torch.sqrt(v + eps)
def _scatter_add(tgt, idx, src, axis=0):
    return tgt.clone().index_add_(axis, idx, src)
def _segment_sum(src, seg, n):
    out = torch.zeros((n,) + src.shape[1:], dtype=src.dtype)
    return out.index_add_(0, seg, src)
def _pad(x, pw):
    flat = tuple(v for pair in reversed(pw) for v in pair)
    return torch.nn.functional.pad(x, flat)

kernel_name = 'concat_heads__gqa_block_cached__mha_block_cached__near_ridge'

def setup_inputs():

    _w = (lambda a: (lambda t: t.to(torch.bfloat16) if t.is_floating_point() else t)(torch.as_tensor(a)))
    def _A_setup():
        B, Sq, D = 8, 64, 512
        Hq, Hkv, Sk, Dh = 32, 8, 1024, 128
        assert Hq % Hkv == 0, (Hq, Hkv)
        return {
            "x": _w((lambda *s: torch.randn(*s, dtype=torch.bfloat16) * 0.8)(B, Sq, D)),
            "k_cache": _w((lambda *s: torch.randn(*s, dtype=torch.bfloat16) * 0.8)(B, Hkv, Sk, Dh)),
            "v_cache": _w((lambda *s: torch.randn(*s, dtype=torch.bfloat16) * 0.05)(B, Hkv, Sk, Dh)),
            "wq": _w((lambda *s: torch.randn(*s, dtype=torch.bfloat16) * 0.8)(D, Hq * Dh) * (D ** -0.5)),
            "wo": _w((lambda *s: torch.randn(*s, dtype=torch.bfloat16) * 0.05)(Hq * Dh, D) * ((Hq * Dh) ** -0.5)),
        }
    _A_in = _A_setup()

    def _B_setup():
        B, Sq, D = 8, 64, 512
        H, Sk, Dh = 32, 1024, 128
        return {
            "x": _w((lambda *s: torch.randn(*s, dtype=torch.bfloat16) * 0.8)(B, Sq, D)),
            "k_cache": _w((lambda *s: torch.randn(*s, dtype=torch.bfloat16) * 0.8)(B, H, Sk, Dh)),
            "v_cache": _w((lambda *s: torch.randn(*s, dtype=torch.bfloat16) * 0.05)(B, H, Sk, Dh)),
            "wq": _w((lambda *s: torch.randn(*s, dtype=torch.bfloat16) * 0.8)(D, H * Dh) * (D ** -0.5)),
            "wo": _w((lambda *s: torch.randn(*s, dtype=torch.bfloat16) * 0.05)(H * Dh, D) * ((H * Dh) ** -0.5)),
        }
    _B_in = _B_setup()

    return {
        "A_x": _A_in["x"],
        "A_k_cache": _A_in["k_cache"],
        "A_v_cache": _A_in["v_cache"],
        "A_wq": _A_in["wq"],
        "A_wo": _A_in["wo"],
        "B_x": _B_in["x"],
        "B_k_cache": _B_in["k_cache"],
        "B_v_cache": _B_in["v_cache"],
        "B_wq": _B_in["wq"],
        "B_wo": _B_in["wo"],
    }

def reference(A_x, A_k_cache, A_v_cache, A_wq, A_wo, B_x, B_k_cache, B_v_cache, B_wq, B_wo):
    def _A_ref(x, k_cache, v_cache, wq, wo):
        B, Sq, D = x.shape
        Hq, Dh = 32, 128
        Hkv = k_cache.shape[1]
        rep = Hq // Hkv
        q = (lambda x, *d: x.permute(*d))((x @ wq).reshape(B, Sq, Hq, Dh), 0, 2, 1, 3)
        k = (lambda x, n, axis: torch.repeat_interleave(x, n, dim=axis))(k_cache, rep, axis=1)
        v = (lambda x, n, axis: torch.repeat_interleave(x, n, dim=axis))(v_cache, rep, axis=1)
        scores = torch.einsum("bhqd,bhkd->bhqk", q, k) * (Dh ** -0.5)
        p = _softmax(scores, axis=-1)
        o = torch.einsum("bhqk,bhkd->bhqd", p, v)
        return (lambda x, *d: x.permute(*d))(o, 0, 2, 1, 3).reshape(B, Sq, Hq * Dh) @ wo

    def _B_ref(x, k_cache, v_cache, wq, wo):
        B, Sq, D = x.shape
        H, Dh = 32, 128
        q = (lambda x, *d: x.permute(*d))((x @ wq).reshape(B, Sq, H, Dh), 0, 2, 1, 3)
        scores = torch.einsum("bhqd,bhkd->bhqk", q, k_cache) * (Dh ** -0.5)
        p = _softmax(scores, axis=-1)
        o = torch.einsum("bhqk,bhkd->bhqd", p, v_cache)
        return (lambda x, *d: x.permute(*d))(o, 0, 2, 1, 3).reshape(B, Sq, H * Dh) @ wo

    a = _A_ref(A_x, A_k_cache, A_v_cache, A_wq, A_wo)
    b = _B_ref(B_x, B_k_cache, B_v_cache, B_wq, B_wo)
    return torch.concatenate([a, b], axis=-1)
```

```python
import sys, math

NAME = "concat_heads__gqa_block_cached__mha_block_cached__near_ridge"

class Asm:
    def __init__(self):
        self.lines = []
        self.uid = 0
    def e(self, s):
        self.lines.append("    " + s)
    def c(self, s):
        self.lines.append("    ; " + s)
    def label(self, s):
        self.lines.append(s + ":")
    def raw(self, s):
        self.lines.append(s)
    def newlabel(self, base):
        self.uid += 1
        return "L_%s_%d" % (base, self.uid)
    def text(self):
        return "\n".join(self.lines) + "\n"

def vr(a, n=1):
    return "v%d" % a if n == 1 else "v[%d:%d]" % (a, a + n - 1)
def sr(a, n=1):
    return "s%d" % a if n == 1 else "s[%d:%d]" % (a, a + n - 1)

SLOT = 16384
NSLOT = 5
LDS_BYTES = SLOT * NSLOT

WS_O = 0
WS_P = 8 << 20
WS_F = 24 << 20

S_PTR = 4
SRD_X, SRD_WQ, SRD_K, SRD_V, SRD_WO, SRD_OWS, SRD_PWS, SRD_OUT, SRD_FL = 32, 36, 40, 44, 48, 52, 56, 60, 64
S_X, S_R, S_BR, S_B, S_H, S_W, S_QB, S_P = 68, 69, 70, 71, 72, 73, 74, 75
S_CUR, S_FILL, S_J, S_KVOFF, S_C, S_T = 76, 77, 78, 79, 80, 81
S_T0, S_T1, S_T2, S_T3 = 82, 83, 84, 85
S_WLDS = 86
S_JOB = 87
S_NEXT_FREE = 96

V_LANE = 1
V_OKV = 2
V_O1K = 6
V_O8K = 10
V_BQ = 14
V_BK = 15
V_BV = 16
V_BW = 17
V_BWO = 18
V_MC = 20
V_L = 21
V_T0, V_T1, V_T2 = 19, 22, 23
V_A = 24
V_Q = 32
V_O = 64
V_S = 128
V_PF = 144
V_F = 152
V_L16 = 184
V_SC = 185
V_T3, V_T4, V_T5 = 186, 187, 188
V_WACC = 64
V_WF = 96
V_OB = 128

def slot_of(n):
    return (n % NSLOT) * SLOT

def prologue_common(a):
    a.e("s_cmp_ge_u32 s2, 512")
    a.e("s_cbranch_scc1 L_end_%s" % a.kname)
    a.e("s_load_dwordx16 s[4:19], s[0:1], 0")
    a.e("s_load_dwordx8 s[20:27], s[0:1], 64")
    a.e("s_load_dwordx2 s[28:29], s[0:1], 96")
    a.e("v_and_b32 v%d, 63, v0" % V_LANE)
    a.e("v_lshrrev_b32 v%d, 6, v0" % V_T0)
    a.e("s_and_b32 s%d, s2, 7" % S_X)
    a.e("v_readfirstlane_b32 s%d, v%d" % (S_W, V_T0))
    a.e("s_lshr_b32 s%d, s2, 3" % S_R)
    a.e("s_and_b32 s%d, s%d, 3" % (S_R, S_R))
    a.e("s_lshr_b32 s%d, s2, 5" % S_BR)
    a.e("s_and_b32 s%d, s%d, 1" % (S_BR, S_BR))
    a.e("s_lshr_b32 s%d, s2, 6" % S_B)
    a.e("s_lshl_b32 s%d, s%d, 2" % (S_H, S_X))
    a.e("s_add_u32 s%d, s%d, s%d" % (S_H, S_H, S_R))
    a.e("s_and_b32 s%d, s%d, 1" % (S_QB, S_W))
    a.e("s_lshr_b32 s%d, s%d, 1" % (S_P, S_W))
    a.e("s_lshl_b32 s%d, s%d, 12" % (S_WLDS, S_W))
    a.e("s_mov_b32 s%d, s2" % S_JOB)
    a.e("v_lshlrev_b32 v%d, 4, v%d" % (V_L16, V_LANE))
    a.e("s_waitcnt lgkmcnt(0)")
    a.e("s_cmp_eq_u32 s%d, 1" % S_BR)
    for i in range(5):
        a.e("s_cselect_b64 s[%d:%d], s[%d:%d], s[%d:%d]" % (4 + 2 * i, 5 + 2 * i, 14 + 2 * i, 15 + 2 * i, 4 + 2 * i, 5 + 2 * i))

def make_srd(a, srd, ptr, off_sreg, nrec):
    if off_sreg is None:
        a.e("s_mov_b32 s%d, s%d" % (srd, ptr))
        a.e("s_mov_b32 s%d, s%d" % (srd + 1, ptr + 1))
    else:
        a.e("s_add_u32 s%d, s%d, %s" % (srd, ptr, off_sreg))
        a.e("s_addc_u32 s%d, s%d, 0" % (srd + 1, ptr + 1))
    a.e("s_mov_b32 s%d, 0x%x" % (srd + 2, nrec))
    a.e("s_mov_b32 s%d, 0x00020000" % (srd + 3))

def lane_consts(a, need_attn=True):
    L = V_LANE
    a.e("v_lshrrev_b32 v%d, 4, v%d" % (V_T0, L))
    a.e("v_and_b32 v%d, 15, v%d" % (V_T1, L))
    a.e("v_lshlrev_b32 v%d, 2, v%d" % (V_T2, V_T0))
    a.e("v_xor_b32 v%d, v%d, v%d" % (V_T1, V_T1, V_T2))
    for i in range(4):
        a.e("v_xor_b32 v%d, %d, v%d" % (V_T2, i, V_T1))
        a.e("v_lshlrev_b32 v%d, 4, v%d" % (V_T2, V_T2))
        if need_attn:
            a.e("v_lshl_add_u32 v%d, v%d, 8, v%d" % (V_OKV + i, V_T0, V_T2))
            a.e("v_add_u32 v%d, s%d, v%d" % (V_OKV + i, S_WLDS, V_OKV + i))
            a.e("v_lshl_add_u32 v%d, v%d, 13, v%d" % (V_O8K + i, V_T0, V_T2))
            a.e("s_lshl_b32 s%d, s%d, 17" % (S_T0, S_W))
            a.e("s_add_u32 s%d, s%d, %d" % (S_T0, S_T0, i * 31744))
            a.e("v_add_u32 v%d, s%d, v%d" % (V_O8K + i, S_T0, V_O8K + i))
        a.e("v_lshl_add_u32 v%d, v%d, 10, v%d" % (V_O1K + i, V_T0, V_T2))
        a.e("s_lshl_b32 s%d, s%d, 14" % (S_T0, S_W))
        a.e("s_add_u32 s%d, s%d, %d" % (S_T0, S_T0, i * 3072))
        a.e("v_add_u32 v%d, s%d, v%d" % (V_O1K + i, S_T0, V_O1K + i))
    A, B, C = V_A, V_A + 1, V_A + 2
    if need_attn:
        a.e("v_and_b32 v%d, 31, v%d" % (A, L))
        a.e("v_and_b32 v%d, 3, v%d" % (B, A))
        a.e("v_lshlrev_b32 v%d, 2, v%d" % (B, B))
        a.e("v_bfe_u32 v%d, v%d, 2, 2" % (C, A))
        a.e("v_or_b32 v%d, v%d, v%d" % (B, B, C))
        a.e("v_lshrrev_b32 v%d, 5, v%d" % (C, L))
        a.e("v_xor_b32 v%d, v%d, v%d" % (B, B, C))
        a.e("v_lshlrev_b32 v%d, 4, v%d" % (B, B))
        a.e("v_lshl_add_u32 v%d, v%d, 8, v%d" % (B, A, B))
        a.e("s_lshl_b32 s%d, s%d, 13" % (S_T0, S_QB))
        a.e("v_add_u32 v%d, s%d, v%d" % (V_BQ, S_T0, B))
        a.e("s_lshl_b32 s%d, s%d, 13" % (S_T0, S_P))
        a.e("v_add_u32 v%d, s%d, v%d" % (V_BK, S_T0, B))
    I, G1, G0, CH, R4 = V_A, V_A + 1, V_A + 2, V_A + 3, V_A + 4
    F1, T5 = V_A + 5, V_A + 6
    a.e("v_and_b32 v%d, 15, v%d" % (I, L))
    a.e("v_lshrrev_b32 v%d, 1, v%d" % (G1, V_T0))
    a.e("v_and_b32 v%d, 1, v%d" % (G0, V_T0))
    a.e("v_bfe_u32 v%d, v%d, 1, 1" % (CH, I))
    a.e("v_lshl_add_u32 v%d, v%d, 1, v%d" % (CH, G0, CH))
    a.e("v_lshrrev_b32 v%d, 2, v%d" % (R4, I))
    a.e("v_lshlrev_b32 v%d, 2, v%d" % (F1, R4))
    a.e("v_xor_b32 v%d, v%d, v%d" % (CH, CH, F1))
    a.e("v_and_b32 v%d, 1, v%d" % (I, I))
    a.e("v_lshlrev_b32 v%d, 3, v%d" % (I, I))
    a.e("v_xor_b32 v%d, v%d, v%d" % (T5, CH, G1))
    a.e("v_lshl_add_u32 v%d, v%d, 4, v%d" % (T5, T5, I))
    a.e("v_lshl_add_u32 v%d, v%d, 2, v%d" % (F1, G1, R4))
    a.e("v_lshl_add_u32 v%d, v%d, 8, v%d" % (T5, F1, T5))
    if need_attn:
        a.e("s_lshl_b32 s%d, s%d, 13" % (S_T0, S_P))
        a.e("v_add_u32 v%d, s%d, v%d" % (V_BV, S_T0, T5))
    a.e("s_lshl_b32 s%d, s%d, 7" % (S_T0, S_P))
    a.e("v_xor_b32 v%d, s%d, v%d" % (V_BWO, S_T0, T5))
    if need_attn:
        a.e("v_lshlrev_b32 v%d, 1, v%d" % (T5, G1))
        a.e("v_xor_b32 v%d, v%d, v%d" % (T5, CH, T5))
        a.e("v_lshl_add_u32 v%d, v%d, 4, v%d" % (T5, T5, I))
        a.e("v_lshl_add_u32 v%d, v%d, 3, v%d" % (F1, G1, R4))
        a.e("v_lshl_add_u32 v%d, v%d, 8, v%d" % (T5, F1, T5))
        a.e("v_xor_b32 v%d, s%d, v%d" % (V_BW, S_T0, T5))

def dma(a, kind, idx, slot, nt=False):
    if isinstance(slot, tuple):
        a.e("s_add_u32 s%d, s%d, s%d" % (S_T0, slot[1], S_WLDS))
    else:
        a.e("s_add_u32 s%d, s%d, %d" % (S_T0, S_WLDS, slot))
    a.e("s_mov_b32 m0, s%d" % S_T0)
    srd, voff, step = {"x": (SRD_X, V_O1K, 256), "wq": (SRD_WQ, V_O8K, 524288), "k": (SRD_K, V_OKV, 16384),
                       "v": (SRD_V, V_OKV, 16384), "wo": (SRD_WO, V_O1K, 65536)}[kind]
    if isinstance(idx, tuple):
        soff = "s%d" % idx[1]
        a.e("s_nop 0")
    else:
        a.e("s_mov_b32 s%d, %d" % (S_T1, idx * step))
        soff = "s%d" % S_T1
    for i in range(4):
        a.e("buffer_load_dwordx4 v%d, s[%d:%d], %s offen offset:%d lds%s" % (voff + i, srd, srd + 3, soff, i * 1024, " nt" if nt else ""))

def phase_sync(a, vm):
    a.e("s_waitcnt vmcnt(%d) lgkmcnt(0)" % vm)
    a.e("s_barrier")

def addr_base(a, dst, base, slot):
    if isinstance(slot, tuple):
        a.e("v_add_u32 v%d, s%d, v%d" % (dst, slot[1], base))
    else:
        a.e("v_add_u32 v%d, %d, v%d" % (dst, slot, base))

def read_bfrags(a, base, slot, dst):
    addr_base(a, V_A, base, slot)
    for s in range(1, 8):
        a.e("v_xor_b32 v%d, %d, v%d" % (V_A + s, s << 5, V_A))
    for s in range(8):
        a.e("ds_read_b128 %s, v%d" % (vr(dst + 4 * s, 4), V_A + s))

def phase_w(a, base, slot, natural, acc, fr, bfr, first):
    addr_base(a, V_A, base, slot)
    ub = 4 if natural else 5
    uo = 1024 if natural else 2048
    a.e("v_xor_b32 v%d, %d, v%d" % (V_A + 1, 1 << ub, V_A))
    a.e("v_xor_b32 v%d, %d, v%d" % (V_A + 2, 64, V_A))
    a.e("v_xor_b32 v%d, %d, v%d" % (V_A + 3, 64 | (1 << ub), V_A))
    order = [(t, e) for t in range(4) for e in range(2)]
    for n, (t, e) in enumerate(order):
        for u in range(2):
            a.e("ds_read_b64_tr_b16 %s, v%d offset:%d" % (vr(fr + 4 * n + 2 * u, 2), V_A + 2 * e + u, u * uo + t * 4096))
    for n, (t, e) in enumerate(order):
        a.e("s_waitcnt lgkmcnt(%d)" % min(15, 14 - 2 * n))
        cc = "0" if (first and t == 0) else vr(acc + 16 * e, 16)
        a.e("v_mfma_f32_32x32x16_bf16 %s, %s, %s, %s" % (vr(acc + 16 * e, 16), vr(fr + 4 * n, 4), vr(bfr + 4 * t, 4), cc))

def phase_k(a, slot, last=False):
    addr_base(a, V_A, V_BK, slot)
    for s in range(1, 8):
        a.e("v_xor_b32 v%d, %d, v%d" % (V_A + s, s << 5, V_A))
    for s in range(8):
        a.e("ds_read_b128 %s, v%d" % (vr(V_F + 4 * s, 4), V_A + s))
    for s in range(8):
        a.e("s_waitcnt lgkmcnt(%d)" % (7 - s))
        cc = "0" if s == 0 else vr(V_S, 16)
        a.e("v_mfma_f32_32x32x16_bf16 %s, %s, %s, %s" % (vr(V_S, 16), vr(V_F + 4 * s, 4), vr(V_Q + 4 * s, 4), cc))
    a.e("s_nop 11")
    S = V_S
    a.e("v_max3_f32 v%d, v%d, v%d, v%d" % (V_T0, S, S + 1, S + 2))
    a.e("v_max3_f32 v%d, v%d, v%d, v%d" % (V_T1, S + 3, S + 4, S + 5))
    a.e("v_max3_f32 v%d, v%d, v%d, v%d" % (V_T0, V_T0, S + 6, S + 7))
    a.e("v_max3_f32 v%d, v%d, v%d, v%d" % (V_T1, V_T1, S + 8, S + 9))
    a.e("v_max3_f32 v%d, v%d, v%d, v%d" % (V_T0, V_T0, S + 10, S + 11))
    a.e("v_max3_f32 v%d, v%d, v%d, v%d" % (V_T1, V_T1, S + 12, S + 13))
    a.e("v_max3_f32 v%d, v%d, v%d, v%d" % (V_T0, V_T0, S + 14, S + 15))
    a.e("v_max_f32 v%d, v%d, v%d" % (V_T0, V_T0, V_T1))
    a.e("v_mov_b32 v%d, v%d" % (V_T1, V_T0))
    a.e("s_nop 1")
    a.e("v_permlane32_swap_b32 v%d, v%d" % (V_T0, V_T1))
    a.e("s_nop 1")
    a.e("v_max_f32 v%d, v%d, v%d" % (V_T0, V_T0, V_T1))
    a.e("v_mul_f32 v%d, s%d, v%d" % (V_T0, S_C, V_T0))
    a.e("v_sub_f32 v%d, v%d, v%d" % (V_T1, V_T0, V_MC))
    a.e("v_cmp_lt_f32 vcc, s%d, v%d" % (S_T, V_T1))
    skip = a.newlabel("norescale")
    a.e("s_nop 1")
    a.e("s_cbranch_vccz %s" % skip)
    a.e("v_max_f32 v%d, v%d, v%d" % (V_T0, V_T0, V_MC))
    a.e("v_sub_f32 v%d, v%d, v%d" % (V_T1, V_MC, V_T0))
    a.e("v_exp_f32 v%d, v%d" % (V_T1, V_T1))
    a.e("v_mov_b32 v%d, v%d" % (V_MC, V_T0))
    a.e("v_mul_f32 v%d, v%d, v%d" % (V_L, V_L, V_T1))
    for i in range(64):
        a.e("v_mul_f32 v%d, v%d, v%d" % (V_O + i, V_O + i, V_T1))
    a.label(skip)
    for r in range(16):
        a.e("v_fma_f32 v%d, v%d, s%d, -v%d" % (S + r, S + r, S_C, V_MC))
    for r in range(16):
        a.e("v_exp_f32 v%d, v%d" % (S + r, S + r))
    a.e("v_add_f32 v%d, v%d, v%d" % (V_T0, S + 0, S + 1))
    a.e("v_add_f32 v%d, v%d, v%d" % (V_T1, S + 2, S + 3))
    for r in range(4, 16, 2):
        a.e("v_add_f32 v%d, v%d, v%d" % (V_T0, V_T0, S + r))
        a.e("v_add_f32 v%d, v%d, v%d" % (V_T1, V_T1, S + r + 1))
    for i in range(8):
        a.e("v_cvt_pk_bf16_f32 v%d, v%d, v%d" % (V_PF + i, S + 2 * i, S + 2 * i + 1))
    a.e("v_add_f32 v%d, v%d, v%d" % (V_T0, V_T0, V_T1))
    a.e("v_add_f32 v%d, v%d, v%d" % (V_L, V_L, V_T0))

def phase_v(a, slot):
    addr_base(a, V_A, V_BV, slot)
    for n in range(1, 8):
        dblk, u = n >> 1, n & 1
        a.e("v_xor_b32 v%d, %d, v%d" % (V_A + n, (dblk << 6) | (u << 5), V_A))
    order = [(t, dblk) for t in range(2) for dblk in range(4)]
    for n, (t, dblk) in enumerate(order):
        for u in range(2):
            a.e("ds_read_b64_tr_b16 %s, v%d offset:%d" % (vr(V_F + 4 * n + 2 * u, 2), V_A + 2 * dblk + u, u * 2048 + t * 4096))
    for n, (t, dblk) in enumerate(order):
        a.e("s_waitcnt lgkmcnt(%d)" % min(15, 14 - 2 * n))
        a.e("v_mfma_f32_32x32x16_bf16 %s, %s, %s, %s" % (vr(V_O + 16 * dblk, 16), vr(V_F + 4 * n, 4), vr(V_PF + 4 * t, 4), vr(V_O + 16 * dblk, 16)))

def advance_slot(a):
    a.e("s_mov_b32 s%d, s%d" % (S_FILL, S_CUR))
    a.e("s_add_u32 s%d, s%d, %d" % (S_CUR, S_CUR, SLOT))
    a.e("s_cmp_eq_u32 s%d, %d" % (S_CUR, LDS_BYTES))
    a.e("s_cselect_b32 s%d, 0, s%d" % (S_CUR, S_CUR))

def gen_attn(a, cfg):
    a.kname = "attn"
    a.raw(".globl attn_kernel\n.p2align 8\n.type attn_kernel,@function")
    a.label("attn_kernel")
    prologue_common(a)
    a.e("s_lshl_b32 s%d, s%d, 16" % (S_T0, S_B))
    make_srd(a, SRD_X, 4, "s%d" % S_T0, 65536)
    a.e("s_lshl_b32 s%d, s%d, 8" % (S_T0, S_H))
    make_srd(a, SRD_WQ, 10, "s%d" % S_T0, 511 * 8192 + 256)
    a.e("s_lshl_b32 s%d, s%d, 3" % (S_T0, S_B))
    a.e("s_add_u32 s%d, s%d, s%d" % (S_T0, S_T0, S_X))
    a.e("s_lshl_b32 s%d, s%d, 5" % (S_T1, S_B))
    a.e("s_add_u32 s%d, s%d, s%d" % (S_T1, S_T1, S_H))
    a.e("s_cmp_eq_u32 s%d, 1" % S_BR)
    a.e("s_cselect_b32 s%d, s%d, s%d" % (S_T0, S_T1, S_T0))
    a.e("s_lshl_b32 s%d, s%d, 18" % (S_T0, S_T0))
    make_srd(a, SRD_K, 6, "s%d" % S_T0, 262144)
    make_srd(a, SRD_V, 8, "s%d" % S_T0, 262144)
    a.e("s_lshl_b32 s%d, s%d, 14" % (S_T0, S_JOB))
    a.e("s_add_u32 s%d, s%d, %d" % (S_T0, S_T0, WS_O))
    make_srd(a, SRD_OWS, 28, "s%d" % S_T0, 16384)
    lane_consts(a)
    c = (128 ** -0.5) * math.log2(math.e)
    import struct
    a.e("s_mov_b32 s%d, 0x%08x" % (S_C, struct.unpack("<I", struct.pack("<f", c))[0]))
    a.e("s_mov_b32 s%d, 0x41000000" % S_T)
    ph = []
    for i in range(4):
        ph += [("x", i), ("wq", 2 * i), ("wq", 2 * i + 1)]
    ph += [("qx", 0)]
    for j in range(16):
        ph += [("k", j), ("v", j)]
    ph += [("ox", 0), ("ox", 1)]
    NPH = len(ph)
    hasdma = lambda n: 0 <= n < NPH and ph[n][0] in ("x", "wq", "k", "v")
    nt = cfg.get("nt", False)
    def issue(n):
        if hasdma(n):
            dma(a, ph[n][0], ph[n][1], slot_of(n), nt=(nt and ph[n][0] in "kv"))
    def vmn(n):
        return 4 * sum(hasdma(m) for m in range(n + 1, n + 4))
    for n in range(4):
        issue(n)
    a.e("v_mov_b32 v%d, 0xff800000" % V_MC)
    a.e("v_mov_b32 v%d, 0" % V_L)
    for n in range(12):
        kind, idx = ph[n]
        a.c("phase %d %s%d" % (n, kind, idx))
        phase_sync(a, vmn(n))
        issue(n + 4)
        if kind == "x":
            read_bfrags(a, V_BQ, slot_of(n), V_Q)
        else:
            phase_w(a, V_BW, slot_of(n), True, V_O, V_F, V_Q + 16 * (idx & 1), first=(idx == 0))
    a.c("Q exchange write")
    a.e("s_nop 11")
    qs = slot_of(12)
    a.e("v_lshrrev_b32 v%d, 5, v%d" % (V_T0, V_LANE))
    a.e("v_lshlrev_b32 v%d, 4, v%d" % (V_T1, V_T0))
    a.e("v_xor_b32 v%d, v%d, v%d" % (V_T1, V_T1, V_BQ))
    a.e("v_lshl_add_u32 v%d, v%d, 3, v%d" % (V_T1, V_T0, V_T1))
    a.e("v_add_u32 v%d, %d, v%d" % (V_T1, qs, V_T1))
    a.e("s_lshl_b32 s%d, s%d, 7" % (S_T0, S_P))
    a.e("v_xor_b32 v%d, s%d, v%d" % (V_T1, S_T0, V_T1))
    for e in range(2):
        for g in range(4):
            r = V_O + 16 * e + 4 * g
            k = 4 * e + g
            a.e("v_cvt_pk_bf16_f32 v%d, v%d, v%d" % (V_F + 2 * k, r, r + 1))
            a.e("v_cvt_pk_bf16_f32 v%d, v%d, v%d" % (V_F + 2 * k + 1, r + 2, r + 3))
            a.e("v_xor_b32 v%d, %d, v%d" % (V_A + k, k << 4, V_T1))
            a.e("ds_write_b64 v%d, %s" % (V_A + k, vr(V_F + 2 * k, 2)))
    a.c("phase 12 qx")
    phase_sync(a, vmn(12))
    issue(16)
    read_bfrags(a, V_BQ, qs, V_Q)
    for i in range(64):
        a.e("v_mov_b32 v%d, 0" % (V_O + i))
    a.e("s_mov_b32 s%d, %d" % (S_CUR, slot_of(13)))
    a.e("s_mov_b32 s%d, %d" % (S_FILL, slot_of(12)))
    a.e("s_mov_b32 s%d, %d" % (S_KVOFF, 2 * 16384))
    a.e("s_mov_b32 s%d, 0" % S_J)
    a.raw(".p2align 6")
    a.label("L_loop")
    phase_sync(a, 12)
    dma(a, "k", ("s", S_KVOFF), ("s", S_FILL), nt=nt)
    phase_k(a, ("s", S_CUR))
    advance_slot(a)
    phase_sync(a, 12)
    dma(a, "v", ("s", S_KVOFF), ("s", S_FILL), nt=nt)
    phase_v(a, ("s", S_CUR))
    advance_slot(a)
    a.e("s_add_u32 s%d, s%d, 16384" % (S_KVOFF, S_KVOFF))
    a.e("s_add_u32 s%d, s%d, 1" % (S_J, S_J))
    a.e("s_cmp_lt_u32 s%d, 14" % S_J)
    a.e("s_cbranch_scc1 L_loop")
    for j in (14, 15):
        n = 13 + 2 * j
        a.c("phase %d k%d" % (n, j))
        phase_sync(a, vmn(n))
        issue(n + 4)
        phase_k(a, slot_of(n))
        if j == 15:
            a.e("v_mov_b32 v%d, v%d" % (V_T0, V_L))
            a.e("s_nop 1")
            a.e("v_permlane32_swap_b32 v%d, v%d" % (V_L, V_T0))
            a.e("s_nop 1")
            a.e("v_add_f32 v%d, v%d, v%d" % (V_L, V_L, V_T0))
            a.e("s_cmp_eq_u32 s%d, 0" % S_P)
            a.e("s_cselect_b32 s%d, %d, %d" % (S_T2, slot_of(45), slot_of(46)))
            a.e("s_cselect_b32 s%d, %d, %d" % (S_T3, slot_of(46), slot_of(45)))
            a.e("s_lshl_b32 s%d, s%d, 13" % (S_T0, S_QB))
            a.e("s_add_u32 s%d, s%d, s%d" % (S_T2, S_T2, S_T0))
            a.e("s_add_u32 s%d, s%d, s%d" % (S_T3, S_T3, S_T0))
            a.e("v_lshlrev_b32 v%d, 3, v%d" % (V_T0, V_LANE))
            a.e("v_add_u32 v%d, s%d, v%d" % (V_T1, S_T3, V_T0))
            a.e("ds_write_b64 v%d, %s" % (V_T1, vr(V_MC, 2)))
        n += 1
        a.c("phase %d v%d" % (n, j))
        phase_sync(a, vmn(n))
        issue(n + 4)
        if j == 15:
            a.e("v_lshlrev_b32 v%d, 3, v%d" % (V_T0, V_LANE))
            a.e("v_add_u32 v%d, s%d, v%d" % (V_T1, S_T2, V_T0))
            a.e("ds_read_b64 %s, v%d" % (vr(V_T3, 2), V_T1))
            a.e("s_waitcnt lgkmcnt(0)")
            a.e("v_max_f32 v%d, v%d, v%d" % (V_T0, V_MC, V_T3))
            a.e("v_sub_f32 v%d, v%d, v%d" % (V_T1, V_MC, V_T0))
            a.e("v_sub_f32 v%d, v%d, v%d" % (V_T2, V_T3, V_T0))
            a.e("v_exp_f32 v%d, v%d" % (V_T1, V_T1))
            a.e("v_exp_f32 v%d, v%d" % (V_T2, V_T2))
            a.e("s_nop 0")
            a.e("v_mul_f32 v%d, v%d, v%d" % (V_T0, V_L, V_T1))
            a.e("v_fma_f32 v%d, v%d, v%d, v%d" % (V_T0, V_T4, V_T2, V_T0))
            a.e("v_rcp_f32 v%d, v%d" % (V_T0, V_T0))
            a.e("s_nop 0")
            a.e("v_mul_f32 v%d, v%d, v%d" % (V_SC, V_T1, V_T0))
        phase_v(a, slot_of(n))
    a.c("final combine")
    a.e("s_nop 11")
    for i in range(64):
        a.e("v_mul_f32 v%d, v%d, v%d" % (V_O + i, V_O + i, V_SC))
    lp1, ljoin = a.newlabel("p1"), a.newlabel("pj")
    a.e("v_add_u32 v%d, s%d, v%d" % (V_T0, S_T2, V_L16))
    a.e("v_add_u32 v%d, s%d, v%d" % (V_T1, S_T3, V_L16))
    a.e("s_cmp_eq_u32 s%d, 1" % S_P)
    a.e("s_cbranch_scc1 %s" % lp1)
    for pv in range(2):
        if pv == 1:
            a.label(lp1)
        out0 = V_O + 32 * (1 - pv)
        keep0 = V_O + 32 * pv
        for q in range(8):
            a.e("ds_write_b128 v%d, %s offset:%d" % (V_T0, vr(out0 + 4 * q, 4), q * 1024))
        a.e("s_waitcnt lgkmcnt(0)")
        a.e("s_barrier")
        for q in range(8):
            a.e("ds_read_b128 %s, v%d offset:%d" % (vr(V_F + 4 * q, 4), V_T1, q * 1024))
        a.e("s_waitcnt lgkmcnt(0)")
        for i in range(32):
            a.e("v_add_f32 v%d, v%d, v%d" % (keep0 + i, keep0 + i, V_F + i))
        for i in range(16):
            a.e("v_cvt_pk_bf16_f32 v%d, v%d, v%d" % (V_F + i, keep0 + 2 * i, keep0 + 2 * i + 1))
        if pv == 0:
            a.e("s_branch %s" % ljoin)
    a.label(ljoin)
    a.e("s_lshl_b32 s%d, s%d, 13" % (S_T0, S_QB))
    a.e("s_lshl_b32 s%d, s%d, 12" % (S_T1, S_P))
    a.e("s_add_u32 s%d, s%d, s%d" % (S_T0, S_T0, S_T1))
    for n in range(4):
        a.e("buffer_store_dwordx4 %s, v%d, s[%d:%d], s%d offen offset:%d" % (vr(V_F + 4 * n, 4), V_L16, SRD_OWS, SRD_OWS + 3, S_T0, n * 1024))
    a.e("s_waitcnt vmcnt(0)")
    a.label("L_end_attn")
    a.e("s_endpgm")

def gen_oproj(a, cfg):
    a.kname = "oproj"
    a.raw(".globl oproj_kernel\n.p2align 8\n.type oproj_kernel,@function")
    a.label("oproj_kernel")
    prologue_common(a)
    a.e("s_lshl_b32 s%d, s%d, 19" % (S_T0, S_X))
    a.e("s_lshl_b32 s%d, s%d, 8" % (S_T1, S_R))
    a.e("s_add_u32 s%d, s%d, s%d" % (S_T0, S_T0, S_T1))
    make_srd(a, SRD_WO, 12, "s%d" % S_T0, 511 * 1024 + 256)
    a.e("s_and_b32 s%d, s%d, 0x1e7" % (S_T0, S_JOB))
    a.e("s_lshl_b32 s%d, s%d, 14" % (S_T0, S_T0))
    a.e("s_add_u32 s%d, s%d, %d" % (S_T0, S_T0, WS_O))
    make_srd(a, SRD_OWS, 28, "s%d" % S_T0, 3 * 131072 + 16384)
    a.e("s_lshl_b32 s%d, s%d, 15" % (S_T0, S_JOB))
    a.e("s_add_u32 s%d, s%d, %d" % (S_T0, S_T0, WS_P))
    make_srd(a, SRD_PWS, 28, "s%d" % S_T0, 32768)
    lane_consts(a, need_attn=False)
    for n in range(5):
        dma(a, "wo", n, slot_of(n))
    a.e("v_mov_b32 v%d, v%d" % (V_T0, V_L16))
    for rr in range(4):
        a.e("s_lshl_b32 s%d, s%d, 13" % (S_T0, S_QB))
        a.e("s_add_u32 s%d, s%d, %d" % (S_T0, S_T0, rr * 131072))
        a.e("s_add_u32 s%d, s%d, 4096" % (S_T1, S_T0))
        for ks in range(8):
            a.e("buffer_load_dwordx4 %s, v%d, s[%d:%d], s%d offen offset:%d" % (vr(V_OB + (rr * 8 + ks) * 4, 4), V_T0, SRD_OWS, SRD_OWS + 3, S_T0 if ks < 4 else S_T1, (ks & 3) * 1024))
    a.e("s_waitcnt vmcnt(0)")
    a.e("s_barrier")
    for n in range(3):
        phase_w(a, V_BWO, slot_of(n), False, V_WACC, V_WF, V_OB + 16 * n, first=(n == 0))
    a.e("s_waitcnt lgkmcnt(0)")
    a.e("s_barrier")
    for n in range(5, 8):
        dma(a, "wo", n, slot_of(n))
    for n in range(3, 5):
        phase_w(a, V_BWO, slot_of(n), False, V_WACC, V_WF, V_OB + 16 * n, first=False)
    a.e("s_waitcnt vmcnt(0)")
    a.e("s_barrier")
    for n in range(5, 8):
        phase_w(a, V_BWO, slot_of(n), False, V_WACC, V_WF, V_OB + 16 * n, first=False)
    a.e("s_nop 11")
    for e in range(2):
        a.e("s_lshl_b32 s%d, s%d, 14" % (S_T0, S_P))
        a.e("s_lshl_b32 s%d, s%d, 12" % (S_T1, S_QB))
        a.e("s_add_u32 s%d, s%d, s%d" % (S_T0, S_T0, S_T1))
        a.e("s_add_u32 s%d, s%d, %d" % (S_T0, S_T0, e * 8192))
        for g in range(4):
            a.e("buffer_store_dwordx4 %s, v%d, s[%d:%d], s%d offen offset:%d" % (vr(V_WACC + 16 * e + 4 * g, 4), V_T0, SRD_PWS, SRD_PWS + 3, S_T0, g * 1024))
    a.e("s_waitcnt vmcnt(0)")
    a.label("L_end_oproj")
    a.e("s_endpgm")

def gen_reduce(a, cfg):
    a.kname = "red"
    a.raw(".globl red_kernel\n.p2align 8\n.type red_kernel,@function")
    a.label("red_kernel")
    prologue_common(a)
    a.e("s_and_b32 s%d, s%d, 0x1f8" % (S_T0, S_JOB))
    a.e("s_lshl_b32 s%d, s%d, 15" % (S_T0, S_T0))
    a.e("s_add_u32 s%d, s%d, %d" % (S_T0, S_T0, WS_P))
    make_srd(a, SRD_PWS, 28, "s%d" % S_T0, 8 * 32768)
    make_srd(a, SRD_OUT, 24, None, 8 * 64 * 1024 * 2)
    a.e("s_lshl_b32 s%d, s%d, 12" % (S_T0, S_X))
    a.e("s_lshl_b32 s%d, s%d, 10" % (S_T1, S_W))
    a.e("s_add_u32 s%d, s%d, s%d" % (S_T0, S_T0, S_T1))
    for xx in range(8):
        a.e("buffer_load_dwordx4 %s, v%d, s[%d:%d], s%d offen" % (vr(32 + 4 * xx, 4), V_L16, SRD_PWS, SRD_PWS + 3, S_T0))
        a.e("s_add_u32 s%d, s%d, 32768" % (S_T0, S_T0))
    a.e("s_lshl_b32 s%d, s%d, 6" % (S_T0, S_B))
    a.e("s_and_b32 s%d, s%d, 1" % (S_T1, S_X))
    a.e("s_lshl_b32 s%d, s%d, 5" % (S_T1, S_T1))
    a.e("s_add_u32 s%d, s%d, s%d" % (S_T0, S_T0, S_T1))
    a.e("s_lshl_b32 s%d, s%d, 11" % (S_T0, S_T0))
    a.e("s_lshl_b32 s%d, s%d, 10" % (S_T1, S_BR))
    a.e("s_add_u32 s%d, s%d, s%d" % (S_T0, S_T0, S_T1))
    a.e("s_lshl_b32 s%d, s%d, 8" % (S_T1, S_R))
    a.e("s_add_u32 s%d, s%d, s%d" % (S_T0, S_T0, S_T1))
    a.e("s_lshr_b32 s%d, s%d, 1" % (S_T1, S_X))
    a.e("s_lshl_b32 s%d, s%d, 6" % (S_T1, S_T1))
    a.e("s_add_u32 s%d, s%d, s%d" % (S_T0, S_T0, S_T1))
    a.e("s_lshl_b32 s%d, s%d, 4" % (S_T1, S_W))
    a.e("s_add_u32 s%d, s%d, s%d" % (S_T0, S_T0, S_T1))
    a.e("v_and_b32 v%d, 31, v%d" % (V_T0, V_LANE))
    a.e("v_lshlrev_b32 v%d, 11, v%d" % (V_T0, V_T0))
    a.e("v_lshrrev_b32 v%d, 5, v%d" % (V_T1, V_LANE))
    a.e("v_lshl_add_u32 v%d, v%d, 3, v%d" % (V_T0, V_T1, V_T0))
    a.e("s_waitcnt vmcnt(0)")
    for xx in range(1, 8):
        for i in range(4):
            a.e("v_add_f32 v%d, v%d, v%d" % (32 + i, 32 + i, 32 + 4 * xx + i))
    a.e("v_cvt_pk_bf16_f32 v36, v32, v33")
    a.e("v_cvt_pk_bf16_f32 v37, v34, v35")
    a.e("buffer_store_dwordx2 v[36:37], v%d, s[%d:%d], s%d offen" % (V_T0, SRD_OUT, SRD_OUT + 3, S_T0))
    a.e("s_waitcnt vmcnt(0)")
    a.label("L_end_red")
    a.e("s_endpgm")

def kd(name, vgpr=256, sgpr=S_NEXT_FREE):
    return """.amdhsa_kernel %s
  .amdhsa_next_free_vgpr %d
  .amdhsa_next_free_sgpr %d
  .amdhsa_accum_offset %d
  .amdhsa_group_segment_fixed_size 0
  .amdhsa_kernarg_size 104
  .amdhsa_user_sgpr_count 2
  .amdhsa_user_sgpr_kernarg_segment_ptr 1
  .amdhsa_system_sgpr_workgroup_id_x 1
.end_amdhsa_kernel
""" % (name, vgpr, sgpr, (vgpr + 3) // 4 * 4)

def main(cfg, path):
    a = Asm()
    hdr = open("cdna_kernels/%s.s.ref" % NAME).read().splitlines()
    hdr = [l for l in hdr if l.startswith(";") and "@launch" not in l and "Override launch" not in l and "grid=ceil" not in l]
    for l in hdr:
        a.raw(l)
    a.raw("; @launch kernel=attn_kernel grid=(512,1,1) block=(256,1,1) lds=%d" % LDS_BYTES)
    a.raw("; @launch kernel=oproj_kernel grid=(512,1,1) block=(256,1,1) lds=%d" % LDS_BYTES)
    a.raw("; @launch kernel=red_kernel grid=(512,1,1) block=(256,1,1) lds=0")
    a.raw('.amdgcn_target "amdgcn-amd-amdhsa--gfx950"')
    a.raw(".text")
    gen_attn(a, cfg)
    gen_oproj(a, cfg)
    gen_reduce(a, cfg)
    a.raw('.section .rodata,"a"')
    a.raw(".p2align 6")
    a.raw(kd("attn_kernel"))
    a.raw(".p2align 6")
    a.raw(kd("oproj_kernel"))
    a.raw(".p2align 6")
    a.raw(kd("red_kernel"))
    open(path, "w").write(a.text())

if __name__ == "__main__":
    cfg = {}
    for arg in sys.argv[2:]:
        k, v = arg.split("=")
        cfg[k] = int(v)
    main(cfg, sys.argv[1])
```
